```python
import torch

def _softmax(x, axis=-1):
    return torch.softmax(x, dim=axis)

def _gelu(x):
    return torch.nn.functional.gelu(x, approximate='tanh')

def _silu(x):
    return torch.nn.functional.silu(x)

def _sigmoid(x):
    return torch.sigmoid(x)

def _layernorm(x, axis=-1, eps=1e-05):
    m = x.mean(dim=axis, keepdim=True)
    v = x.var(dim=axis, keepdim=True, unbiased=False)
    return (x - m) / torch.sqrt(v + eps)

def _scatter_add(tgt, idx, src, axis=0):
    return tgt.clone().index_add_(axis, idx, src)

def _segment_sum(src, seg, n):
    out = torch.zeros((n,) + src.shape[1:], dtype=src.dtype)
    return out.index_add_(0, seg, src)

def _pad(x, pw):
    flat = tuple((v for pair in reversed(pw) for v in pair))
    return torch.nn.functional.pad(x, flat)
kernel_name = 'adaLN_cond__sliding_block_cached__dense_activation_gelu__prompt'

def setup_inputs():

    _w = lambda a: (lambda t: t.to(torch.bfloat16) if t.is_floating_point() else t)(torch.as_tensor(a))

    def _A_setup():
        B, Sq, D = (1, 2048, 512)
        Hq, Hkv, Sk, Dh = (32, 32, 2048, 128)
        assert Hq % Hkv == 0, (Hq, Hkv)
        return {'x': _w((lambda *s: torch.randn(*s, dtype=torch.bfloat16) * 0.1)(B, Sq, D)), 'k_cache': _w((lambda *s: torch.randn(*s, dtype=torch.bfloat16) * 0.8)(B, Hkv, Sk, Dh)), 'v_cache': _w((lambda *s: torch.randn(*s, dtype=torch.bfloat16) * 3.2)(B, Hkv, Sk, Dh)), 'wq': _w((lambda *s: torch.randn(*s, dtype=torch.bfloat16) * 0.8)(D, Hq * Dh) * D ** (-0.5)), 'wo': _w((lambda *s: torch.randn(*s, dtype=torch.bfloat16) * 3.2)(Hq * Dh, D) * (Hq * Dh) ** (-0.5))}
    _A_in = _A_setup()

    def _B_setup():
        B, S, D, F = (1, 2048, 512, 1376)
        return {'x': _w((lambda *s: torch.randn(*s, dtype=torch.bfloat16) * 0.1)(B, S, D)), 'w1': _w((lambda *s: torch.randn(*s, dtype=torch.bfloat16) * 3.2)(D, F) * D ** (-0.5)), 'b1': _w((lambda *s: torch.randn(*s, dtype=torch.bfloat16) * 3.2)(F) * 0.01), 'w2': _w((lambda *s: torch.randn(*s, dtype=torch.bfloat16) * 3.2)(F, D) * F ** (-0.5)), 'b2': _w((lambda *s: torch.randn(*s, dtype=torch.bfloat16) * 3.2)(D) * 0.01)}
    _B_in = _B_setup()
    return {'A_x': _A_in['x'], 'A_k_cache': _A_in['k_cache'], 'A_v_cache': _A_in['v_cache'], 'A_wq': _A_in['wq'], 'A_wo': _A_in['wo'], 'B_x': _B_in['x'], 'B_w1': _B_in['w1'], 'B_b1': _B_in['b1'], 'B_w2': _B_in['w2'], 'B_b2': _B_in['b2'], 'c': _w((lambda *s: torch.randn(*s, dtype=torch.bfloat16) * 0.1)(1, 512) * 8.0), 'w_mod': _w((lambda *s: torch.randn(*s, dtype=torch.bfloat16) * 0.1)(512, 6 * 512) * 512 ** (-0.5) * 8.0)}

def reference(A_x, A_k_cache, A_v_cache, A_wq, A_wo, B_x, B_w1, B_b1, B_w2, B_b2, c, w_mod):

    def _A_ref(x, k_cache, v_cache, wq, wo):
        B, Sq, D = x.shape
        Hq, Dh = (32, 128)
        Hkv, Sk = (k_cache.shape[1], k_cache.shape[2])
        W = min(4096, max(256, Sk // 4))
        rep = Hq // Hkv
        q = (lambda x, *d: x.permute(*d))((x @ wq).reshape(B, Sq, Hq, Dh), 0, 2, 1, 3)
        k = (lambda x, n, axis: torch.repeat_interleave(x, n, dim=axis))(k_cache[:, :, Sk - W:, :], rep, axis=1)
        v = (lambda x, n, axis: torch.repeat_interleave(x, n, dim=axis))(v_cache[:, :, Sk - W:, :], rep, axis=1)
        scores = torch.einsum('bhqd,bhkd->bhqk', q, k) * Dh ** (-0.5)
        p = _softmax(scores, axis=-1)
        o = torch.einsum('bhqk,bhkd->bhqd', p, v)
        return (lambda x, *d: x.permute(*d))(o, 0, 2, 1, 3).reshape(B, Sq, Hq * Dh) @ wo

    def _B_ref(x, w1, b1, w2, b2):
        h = torch.einsum('bsd,df->bsf', x, w1) + b1
        h = _gelu(h)
        return torch.einsum('bsf,fd->bsd', h, w2) + b2
    x = A_x
    mod = (_silu(c) @ w_mod).reshape(c.shape[0], 6, 1, -1)
    sa, ca, ga, sb, cb, gb = (mod[:, 0].clone(), mod[:, 1].clone(), mod[:, 2].clone(), mod[:, 3].clone(), mod[:, 4].clone(), mod[:, 5].clone())
    h = _layernorm(x, axis=-1) * (1 + ca) + sa
    x = x + ga * _A_ref(h, A_k_cache, A_v_cache, A_wq, A_wo)
    h = _layernorm(x, axis=-1) * (1 + cb) + sb
    x = x + gb * _B_ref(h, B_w1, B_b1, B_w2, B_b2)
    return x
```

```python
import sys
from common import *
import hazard
from p0 import gen_k0
from p1 import gen_k1
gens = [gen_k0, gen_k1]
try:
    from p2 import gen_k2, gen_k3, gen_k4, gen_k5
    gens += [gen_k2, gen_k3, gen_k4, gen_k5]
except ImportError as e:
    print("note:", e)

def build(gens):
    ks = []; body = []
    for g in gens:
        a = Asm(); info = g(a); ks.append(info)
        body.append(f".globl {info[0]}\n.p2align 8\n.type {info[0]},@function\n" + a.text())
    head = "; adaLN block: mod/LN1 -> Q-proj + attention -> O-proj -> LN2 -> FFN (generated by my own generator scripts)\n"
    for n, grid, blk, lds, _ in ks:
        head += f"; @launch kernel={n} grid=({grid},1,1) block=({blk},1,1) lds={lds}\n"
    s = head + '.amdgcn_target "amdgcn-amd-amdhsa--gfx950"\n.text\n' + "".join(body) + '.section .rodata,"a"\n'
    for k in ks: s += ".p2align 6\n" + k[4]
    return s
if __name__ == "__main__":
    s = build(gens)
    out = sys.argv[1] if len(sys.argv) > 1 else f"cdna_kernels/{NAME}.s"
    open(out, "w").write(s)
    b = hazard.check(s)
    for x in b: print('HAZARD line %d -> %d need %d have %d (%s)\n   %s\n   %s' % x)
    print(len(b), "hazards;", len(s), "bytes")
```

```python
import math, struct
NAME = "adaLN_cond__sliding_block_cached__dense_activation_gelu__prompt"
KA = dict(x=0, k=8, v=16, wq=24, wo=32, bx=40, w1=48, b1=56, w2=64, b2=72, c=80, wmod=88, out=96, dbg=104, ws=112)
WS_MOD = 0x0
WS_H   = 0x100000
WS_H2  = 0x300000
WS_X1  = 0x500000
WS_G   = 0x700000
WS_YP  = 0xD00000
WS_O   = 0x1500000
CS = math.log2(math.e) / math.sqrt(128.0)

def f2u(f): return struct.unpack('<I', struct.pack('<f', f))[0]
def hx(f): return '0x%08x' % f2u(f)

class Asm:
    def __init__(self): self.L = []
    def __call__(self, s):
        for l in s.split('\n'):
            l = l.strip()
            if l: self.L.append(l if l.endswith(':') else '    ' + l)
    def text(self): return '\n'.join(self.L) + '\n'
    def srd(self, d, lo, hi, nrec):
        if lo != d: self(f"s_mov_b32 s{d}, s{lo}\ns_mov_b32 s{d+1}, s{hi}")
        self(f"s_mov_b32 s{d+2}, {nrec}\ns_mov_b32 s{d+3}, 0x20000")
    def srd_off(self, d, lo, off, nrec):
        self(f"s_add_u32 s{d}, s{lo}, {off}\ns_addc_u32 s{d+1}, s{lo+1}, 0\ns_mov_b32 s{d+2}, {nrec}\ns_mov_b32 s{d+3}, 0x20000")

def vr(b, n=4, k='v'): return f"{k}[{b}:{b+n-1}]"
def ar(b, n=4): return vr(b, n, 'a')

def kdesc(name, vgpr, accum, sgpr=102):
    return f""".amdhsa_kernel {name}
  .amdhsa_next_free_vgpr {vgpr}
  .amdhsa_next_free_sgpr {sgpr}
  .amdhsa_accum_offset {accum}
  .amdhsa_group_segment_fixed_size 0
  .amdhsa_kernarg_size 120
  .amdhsa_user_sgpr_count 2
  .amdhsa_user_sgpr_kernarg_segment_ptr 1
  .amdhsa_system_sgpr_workgroup_id_x 1
.end_amdhsa_kernel
"""

class Stream:
    def __init__(self, n):
        self.n = n
        self.mfma = [None] * n
        self.need = [None] * n
        self.gap = [[] for _ in range(n)]
        self.head = []
    def put(self, g, text, tag=None):
        (self.head if g < 0 else self.gap[g]).append((text, tag))
    def render(self):
        q = []
        done = 0
        out = []
        def emit(lst, items):
            nonlocal done
            for text, tag in items:
                lst.append(text)
                if text.startswith('ds_'): q.append(tag)
                elif 'lgkmcnt(0)' in text: done = len(q)
        h = []; emit(h, self.head); out.append(h)
        for g in range(self.n):
            l = []
            t = self.need[g]
            if t is not None:
                idx = max(i for i, x in enumerate(q) if x == t)
                if idx >= done:
                    n = len(q) - 1 - idx
                    assert n <= 15, (g, n)
                    l.append(f"s_waitcnt lgkmcnt({n})")
                    done = idx + 1
            l.append(self.mfma[g])
            emit(l, self.gap[g])
            out.append(l)
        return out
```

```python
import re, sys

TRANS = ('v_exp_f32','v_log_f32','v_rcp_f32','v_rsq_f32','v_sqrt_f32','v_sin_f32','v_cos_f32','v_rcp_iflag_f32')

def regs(tok):
    tok = tok.strip()
    neg = tok.lstrip('-')
    m = re.fullmatch(r'(?:abs\()?\|?([vas])(\d+)\|?\)?', neg)
    if m: return {(m.group(1), int(m.group(2)))}
    m = re.fullmatch(r'([vas])\[(\d+):(\d+)\]', neg)
    if m: return {(m.group(1), i) for i in range(int(m.group(2)), int(m.group(3))+1)}
    if neg in ('vcc',): return {('s','vcc')}
    if neg in ('vcc_lo','vcc_hi'): return {('s','vcc')}
    if neg == 'exec': return {('s','exec')}
    if neg == 'm0': return {('s','m0')}
    return set()

class I:
    def __init__(self, text, ln):
        self.text = text; self.ln = ln
        p = text.split(None, 1)
        self.op = p[0]
        rest = p[1] if len(p) > 1 else ''
        ops = [o.strip() for o in rest.split(',')] if rest else []
        self.mods = ''
        if ops:
            q = ops[-1].split()
            ops[-1] = q[0] if q else ''
            self.mods = rest
        self.ops = ops
        op = self.op
        self.mfma = op.startswith('v_mfma')
        self.valu = op.startswith('v_') and not self.mfma
        self.trans = any(op.startswith(t) for t in TRANS)
        self.vmem = op.startswith(('buffer_','global_','flat_'))
        self.ds = op.startswith('ds_')
        self.salu = op.startswith('s_')
        self.dpp = ('_dpp' in op) or ('quad_perm' in rest) or ('row_' in rest and self.valu)
        self.perml = op.startswith('v_permlane')
        self.dma = self.vmem and (' lds' in text or '_lds_' in op)
        self.w = set(); self.r = set(); self.rc = set(); self.rab = set(); self.sdata = set()
        R = [regs(o) for o in ops]
        if self.mfma:
            self.w = R[0]; self.rab = R[1] | R[2]; self.rc = R[3]; self.r = self.rab | self.rc
            self.passes = 8 if '32x32x16' in op else 4 if '16x16x32' in op else 16
        elif self.valu:
            if op.startswith('v_cmp'):
                self.w = R[0]; self.r = set().union(*R[1:])
                if op.startswith('v_cmpx'): self.w |= {('s','exec')}
            elif self.perml or op.startswith('v_swap'):
                self.w = R[0] | R[1]; self.r = R[0] | R[1]
            elif op.startswith(('v_add_co','v_sub_co','v_addc_co','v_subb_co','v_div_scale','v_mad_u64')):
                self.w = R[0] | R[1]; self.r = set().union(*R[2:])
            elif op == 'v_nop':
                pass
            else:
                self.w = R[0]; self.r = set().union(*R[1:]) if len(R) > 1 else set()
                if op.startswith(('v_fmac','v_dot2c','v_pk_fmac','v_writelane')) or self.dpp: self.r |= R[0]
                if op.startswith('v_cndmask') and len(R) == 3: self.r |= {('s','vcc')}
        elif self.vmem:
            if op in ('buffer_wbl2','buffer_inv'): pass
            elif self.dma:
                self.r = set().union(*R) | {('s','m0')}
            elif 'load' in op:
                self.w = R[0]; self.r = set().union(*R[1:])
            elif op.startswith('buffer_'):
                self.r = set().union(*R); self.sdata = R[0]
                if 'atomic' in op and ' sc0' in text: self.w = R[0]
            else:
                if 'atomic' in op and ' sc0' in text:
                    self.w = R[0]; self.r = set().union(*R[1:]); self.sdata = R[2]
                else:
                    self.r = set().union(*R); self.sdata = R[1]
        elif self.ds:
            if 'read' in op or 'permute' in op or 'swizzle' in op or 'rtn' in op:
                self.w = R[0]; self.r = set().union(*R[1:])
            else:
                self.r = set().union(*R)
        elif self.salu:
            if op.startswith(('s_cmp','s_cbranch','s_branch','s_waitcnt','s_nop','s_barrier','s_endpgm','s_sleep','s_setprio','s_setpc','s_bitcmp')):
                self.r = set().union(*R) if R else set()
            else:
                self.w = R[0] if R else set(); self.r = set().union(*R[1:]) if len(R) > 1 else set()
                if 'saveexec' in op: self.w |= {('s','exec')}
                if op.startswith(('s_addk','s_mulk')): self.r |= R[0]
        self.states = (int(ops[0], 0) + 1) if op == 's_nop' else 1

def need(p, c):
    n = 0; why = ''
    def up(k, s):
        nonlocal n, why
        if k > n: n = k; why = s
    vg = lambda S: {x for x in S if x[0] in 'va'}
    sg = lambda S: {x for x in S if x[0] == 's'}
    if p.valu:
        wv = vg(p.w); ws = sg(p.w)
        if c.mfma and wv & c.r: up(2, 'valu->mfma')
        if c.mfma and ('s','exec') in ws: up(4, 'exec->mfma')
        if c.valu and c.dpp and wv & c.r: up(2, 'valu->dpp')
        if c.perml and wv & c.r: up(2, 'valu->permlane')
        if c.op.startswith(('v_readlane','v_readfirstlane')) and wv & c.r: up(1, 'valu->readlane')
        if p.trans and c.valu and not c.trans and wv & c.r: up(1, 'trans->valu')
        if p.trans and c.trans and wv & c.r: up(1, 'trans->trans')
        if c.vmem and ws & c.r: up(5, 'valu sgpr->vmem')
        if c.valu and ws & c.r: up(4 if c.op.startswith(('v_readlane','v_writelane','v_div_fmas')) else 2, 'valu sgpr->valu')
        if ('s','exec') in ws and c.valu and (c.dpp): up(5, 'exec->dpp')
        if ('s','exec') in ws and (c.perml or c.op.startswith(('v_readlane','v_readfirstlane','v_writelane'))): up(4, 'exec->lane')
        if p.op.startswith('v_dot') and wv & (c.r | c.w):
            if c.op == p.op:
                srcab = set().union(*[regs(o) for o in c.ops[1:3]])
                if wv & srcab: up(3, 'dot->dot ab')
            else: up(3, 'dot->other')
        if ('sdwa' in p.op or 'op_sel' in p.mods) and not p.op.startswith('v_pk') and c.valu and wv & (c.r | c.w): up(1, 'sdwa')
    if p.salu and ('s','m0') in p.w and c.dma: up(1, 'm0->dma')
    if p.mfma:
        k = {4: 8, 8: 12, 16: 20}[p.passes]
        if c.mfma:
            if p.w & c.rab: up(k, 'mfma->mfma ab')
            if p.w & c.rc and not (p.w == c.rc and p.passes == c.passes): up(k-2, 'mfma->mfma c overlap')
            if p.w & c.w and not (p.w == c.rc) : up(k-2, 'mfma waw (conservative)')
        elif c.valu or c.vmem or c.ds:
            if p.w & (c.r | c.w): up(k, 'mfma->valu/mem')
        if c.valu and vg(p.rc) & c.w: up({4: 3, 8: 7, 16: 15}[p.passes], 'mfma C war')
    if p.vmem and len(p.sdata) >= 3 and (p.sdata & c.w): up(2 if c.valu else 1, 'store data war')
    return n, why

def check(text, maxwin=21):
    ins = []; labels = {}
    for ln, raw in enumerate(text.split('\n'), 1):
        s = raw.split(';')[0].split('//')[0].strip()
        if not s: continue
        m = re.match(r'^([\w.$]+):\s*(.*)$', s)
        if m:
            labels[m.group(1)] = len(ins); s = m.group(2).strip()
            if not s: continue
        if s.startswith('.'): continue
        ins.append(I(s, ln))
    succ = []
    for i, x in enumerate(ins):
        if x.op == 's_endpgm' or x.op.startswith('s_setpc'): succ.append([])
        elif x.op == 's_branch': succ.append([labels[x.ops[0]]])
        elif x.op.startswith('s_cbranch'): succ.append([i+1, labels[x.ops[0]]])
        else: succ.append([i+1] if i+1 < len(ins) else [])
    bad = set()
    for i, p in enumerate(ins):
        if not (p.valu or p.mfma or p.vmem or (p.salu and ('s','m0') in p.w)): continue
        lim = 20 if p.mfma else 5
        stack = [(j, 0) for j in succ[i]]; seen = {}
        while stack:
            j, d = stack.pop()
            if j >= len(ins) or d >= lim: continue
            if seen.get(j, 99) <= d: continue
            seen[j] = d
            n, why = need(p, ins[j])
            if n > d: bad.add((p.ln, ins[j].ln, n, d, why, p.text, ins[j].text))
            for k in succ[j]: stack.append((k, d + ins[j].states))
    return sorted(bad)

if __name__ == '__main__':
    b = check(open(sys.argv[1]).read())
    for x in b: print('HAZARD line %d -> %d need %d have %d (%s)\n   %s\n   %s' % x)
    print(len(b), 'hazards')
```

```python
from common import *
def gen_k0(a):
    a("k0_kernel:")
    a("s_cmp_ge_u32 s2, 272\ns_cbranch_scc1 L0_end")
    a(f"s_load_dwordx2 s[4:5], s[0:1], {KA['x']}\ns_load_dwordx4 s[8:11], s[0:1], {KA['c']}\ns_load_dwordx2 s[6:7], s[0:1], {KA['ws']}")
    a("""s_and_b32 s34, s2, 7
    s_lshr_b32 s35, s2, 3
    s_lshr_b32 s28, s34, 1
    s_lshl_b32 s28, s28, 3
    s_lshr_b32 s36, s35, 2
    s_add_u32 s28, s28, s36
    s_and_b32 s29, s34, 1
    s_lshl_b32 s29, s29, 2
    s_and_b32 s36, s35, 3
    s_add_u32 s29, s29, s36
    s_lshl_b32 s30, s29, 7
    s_movk_i32 s31, 1024
    s_cmp_lt_u32 s2, 256
    s_cbranch_scc1 L0_main
    s_sub_u32 s36, s2, 256
    s_lshl_b32 s30, s36, 8
    s_add_u32 s30, s30, 2048
    s_movk_i32 s31, 128
    s_mov_b32 s28, 0
    s_mov_b32 s29, 0
    L0_main:""")
    a("""v_and_b32 v4, 7, v0
    v_lshlrev_b32 v1, 4, v4
    v_bfe_u32 v4, v0, 3, 1
    v_mad_u32_u24 v1, v4, s31, v1
    v_lshrrev_b32 v5, 4, v0            ; kg
    s_mov_b32 s36, 196608
    v_mad_u32_u24 v1, v5, s36, v1      ; w voffset
    v_lshrrev_b32 v4, 2, v0
    v_lshlrev_b32 v2, 10, v4
    v_and_b32 v4, 3, v0
    v_lshl_add_u32 v2, v4, 4, v2       ; x voffset
    v_lshlrev_b32 v3, 2, v0
    s_waitcnt lgkmcnt(0)""")
    a.srd(12, 4, 5, 0x200000)
    a.srd(16, 8, 9, 1024)
    a.srd(20, 10, 11, 0x300000)
    a("buffer_load_dword v6, v3, s[16:19], 0 offen")
    for i in range(32):
        a(f"buffer_load_dwordx4 {vr(8+4*i)}, v1, s[20:23], s30 offen")
        if i < 31: a("s_add_u32 s30, s30, 6144")
    a("s_lshl_b32 s36, s28, 16\ns_lshl_b32 s37, s29, 7")
    for i in range(16):
        a(f"s_add_u32 s32, s36, s37\nbuffer_load_dwordx4 {vr(136+4*i)}, v2, s[12:15], s32 offen")
        if i < 15: a("s_add_u32 s37, s37, 64\ns_and_b32 s37, s37, 1023")
    a(f"""s_waitcnt vmcnt(48)
    v_lshlrev_b32 v224, 16, v6
    v_and_b32 v225, 0xffff0000, v6
    v_mul_f32 v226, {hx(-math.log2(math.e))}, v224
    v_mul_f32 v227, {hx(-math.log2(math.e))}, v225
    v_exp_f32 v226, v226
    v_exp_f32 v227, v227
    s_nop 0
    v_add_f32 v226, 1.0, v226
    v_add_f32 v227, 1.0, v227
    v_rcp_f32 v226, v226
    v_rcp_f32 v227, v227
    s_nop 0
    v_mul_f32 v224, v224, v226
    v_mul_f32 v225, v225, v227
    v_cvt_pk_bf16_f32 v224, v224, v225
    ds_write_b32 v3, v224
    v_lshlrev_b32 v7, 6, v5""")
    for i in range(8): a(f"v_mov_b32 v{216+i}, 0")
    a("s_waitcnt lgkmcnt(0)\ns_barrier")
    for i in range(4): a(f"ds_read_b128 {vr(200+4*i)}, v7 offset:{16*i}")
    a("s_waitcnt lgkmcnt(0)")
    for p in range(16):
        a(f"""v_and_b32 v224, 0xffff, v{200+p}
        v_lshlrev_b32 v225, 16, v{200+p}
        v_lshrrev_b32 v226, 16, v{200+p}
        v_and_b32 v227, 0xffff0000, v{200+p}
        s_waitcnt vmcnt({16+30-2*p})""")
        for r in range(2):
            for d in range(4):
                w = 8 + 4*(2*p+r) + d
                a(f"v_dot2c_f32_bf16 v{216+2*d}, v{224+2*r}, v{w}\nv_dot2c_f32_bf16 v{217+2*d}, v{225+2*r}, v{w}")
    a("""v_and_b32 v4, 15, v0
    v_lshlrev_b32 v4, 5, v4
    v_lshl_add_u32 v4, v5, 9, v4
    v_mov_b32 v228, 0
    v_mov_b32 v229, 0
    ds_write_b128 v4, v[216:219] offset:1024
    ds_write_b128 v4, v[220:223] offset:1040
    s_mov_b32 s36, 0x3f803f80""")
    for i in range(16):
        if i % 4 == 0: a(f"s_waitcnt vmcnt({12-i})")
        for d in range(4):
            x = 136 + 4*i + d
            a(f"v_dot2c_f32_bf16 v228, s36, v{x}\nv_dot2c_f32_bf16 v229, v{x}, v{x}")
    a("""s_waitcnt lgkmcnt(0)
    s_barrier
    v_readfirstlane_b32 s38, v0
    s_nop 1
    s_cmp_ge_u32 s38, 128
    s_cbranch_scc1 L0_skipcol""")
    for i in range(16): a(f"ds_read_b32 v{8+i}, v3 offset:{1024+512*i}")
    for i in range(1, 16):
        a(f"s_waitcnt lgkmcnt({15-i})\nv_add_f32 v8, v8, v{8+i}")
    a(f"""v_cvt_pk_bf16_f32 v8, v8, v8
    v_lshlrev_b32 v8, 16, v8
    s_cmp_lt_u32 s2, 256
    s_cbranch_scc1 L0_notextra""")
    a("s_sub_u32 s36, s2, 256\ns_lshl_b32 s36, s36, 9\ns_add_u32 s36, s36, 4096")
    a.srd_off(24, 6, WS_MOD, 12288)
    a("buffer_store_dword v8, v3, s[24:27], s36 offen\ns_branch L0_skipcol")
    a(f"""L0_notextra:
    s_cmp_lt_u32 s38, 64
    s_cbranch_scc1 L0_issa
    v_add_f32 v8, 1.0, v8
    v_cvt_pk_bf16_f32 v8, v8, v8
    v_lshlrev_b32 v8, 16, v8
    L0_issa:
    v_mul_f32 v8, {hx(CS)}, v8
    ds_write_b32 v3, v8 offset:9216
    L0_skipcol:
    s_cmp_ge_u32 s2, 256
    s_cbranch_scc1 L0_end""")
    a(f"""v_add_f32_dpp v228, v228, v228 quad_perm:[1,0,3,2] row_mask:0xf bank_mask:0xf
    v_add_f32_dpp v229, v229, v229 quad_perm:[1,0,3,2] row_mask:0xf bank_mask:0xf
    s_nop 1
    v_add_f32_dpp v228, v228, v228 quad_perm:[2,3,0,1] row_mask:0xf bank_mask:0xf
    v_add_f32_dpp v229, v229, v229 quad_perm:[2,3,0,1] row_mask:0xf bank_mask:0xf
    v_mul_f32 v228, {hx(1/512)}, v228
    v_mul_f32 v229, {hx(1/512)}, v229
    v_fma_f32 v229, -v228, v228, v229
    v_max_f32 v229, 0, v229
    v_add_f32 v229, {hx(1e-5)}, v229
    v_rsq_f32 v229, v229
    v_and_b32 v4, 3, v0
    v_lshlrev_b32 v7, 5, v4
    v_mul_f32 v228, v228, v229
    s_waitcnt lgkmcnt(0)
    s_barrier""")
    for i in range(2):
        for hf in range(2):
            a(f"ds_read_b128 {vr(8+8*i+4*hf)}, v7 offset:{9216+128*i+16*hf}")
            a(f"ds_read_b128 {vr(24+8*i+4*hf)}, v7 offset:{9216+256+128*i+16*hf}")
    a("""v_lshrrev_b32 v5, 7, v0
    v_lshlrev_b32 v5, 15, v5
    v_lshl_add_u32 v5, v4, 9, v5
    v_bfe_u32 v4, v0, 2, 5
    v_lshl_add_u32 v5, v4, 4, v5
    s_lshl_b32 s36, s28, 16
    s_lshl_b32 s37, s29, 12
    s_add_u32 s36, s36, s37""")
    a.srd_off(24, 6, WS_H, 0x200000)
    for i in range(2):
        for d in range(4):
            a(f"v_lshlrev_b32 v{40+8*i+2*d}, 16, v{136+4*i+d}\nv_and_b32 v{41+8*i+2*d}, 0xffff0000, v{136+4*i+d}")
    for e in range(16): a(f"v_fma_f32 v{40+e}, v{40+e}, v229, -v228")
    a("s_waitcnt lgkmcnt(0)")
    for e in range(16): a(f"v_fma_f32 v{40+e}, v{40+e}, v{24+e}, v{8+e}")
    for e in range(8): a(f"v_cvt_pk_bf16_f32 v{56+e}, v{40+2*e}, v{41+2*e}")
    a("buffer_store_dwordx4 v[56:59], v5, s[24:27], s36 offen\nbuffer_store_dwordx4 v[60:63], v5, s[24:27], s36 offen offset:2048")
    a("L0_end:\ns_endpgm")
    return ("k0_kernel", 272, 256, 10240, kdesc("k0_kernel", 256, 256))
```

```python
from common import *
SLOT = 16640
V_O = 0
V_S = 128
V_WF = 160
V_P = 192
V_M = 208
vK, vV, vW, vK0, vV0, vDKV, vDW, vH0, vH1, vL0, vL1, vT0, vT1, vT2, vST = range(240, 255)
A_Q = 0
A_F = 64
sK, sV, sW, sH, sO = 12, 16, 20, 24, 28
sWave, sCur, sPrev, sWV, sWK, sOff, sCnt, sTmp, sSecond = 32, 33, 34, 35, 36, 37, 38, 39, 40
sO1, sO2, sO3 = 41, 42, 43
D = 4

def acc(db, qb): return V_O + (db*2+qb)*16
def mf(d, a_, b_, c): return f"v_mfma_f32_32x32x16_bf16 {d}, {a_}, {b_}, {c}"

def dma_w(j):
    out = [f"s_add_u32 m0, s{sWV}, {j*SLOT - SLOT}" if j else f"s_sub_u32 m0, s{sWV}, {SLOT}"]
    for i in range(4):
        out.append(f"s_mov_b32 s{sTmp}, {j*524288 + i*31744}")
        out.append(f"buffer_load_dwordx4 v{vDW}, s[{sW}:{sW+3}], s{sTmp} offen offset:{i*1024} lds")
    return out
def load_h(j):
    out = [f"s_mov_b32 s{sTmp}, {j*4096}"]
    for ks in range(4):
        for qb in range(2):
            out.append(f"buffer_load_dwordx4 {ar(j*32 + (ks*2+qb)*4)}, v{vH0+qb}, s[{sH}:{sH+3}], s{sTmp} offen offset:{ks*1024}")
    return out
def dma_k(m0src):
    out = [m0src]
    for i in range(4):
        if i: out.append("s_addk_i32 m0, 16")
        out.append(f"buffer_load_dwordx4 v{vDKV}, s[{sK}:{sK+3}], s{sOff} offen offset:{i*1024} lds")
    return out
def dma_v(m0src):
    out = [m0src]
    for i in range(4):
        out.append(f"buffer_load_dwordx4 v{vDKV}, s[{sV}:{sV+3}], s{sOff} offen offset:{i*1024} lds")
    return out
def fix_m0(lst):
    out = []
    for x in lst:
        if out and ' m0,' in out[-1] and x.endswith(' lds'): out.append("s_nop 0")
        out.append(x)
    return out

def kread(s, ks, dst): return f"ds_read_b128 {ar(dst)}, v{vK} offset:{(s&1)*8320 + (ks>>1)*256 + (ks&1)*32}"

def gen_k1(a):
    a("k1_kernel:")
    a("s_cmp_ge_u32 s2, 256\ns_cbranch_scc1 L1_end")
    a(f"s_load_dwordx4 s[4:7], s[0:1], {KA['k']}\ns_load_dwordx2 s[8:9], s[0:1], {KA['wq']}\ns_load_dwordx2 s[10:11], s[0:1], {KA['ws']}")
    a(f"""v_lshrrev_b32 v1, 6, v0
    v_and_b32 v2, 63, v0
    v_readfirstlane_b32 s{sWave}, v1
    s_and_b32 s44, s2, 1
    s_lshl_b32 s44, s44, 2
    s_lshr_b32 s45, s2, 6
    s_add_u32 s44, s44, s45          ; qtile
    s_and_b32 s45, s2, 6
    s_lshl_b32 s45, s45, 2
    s_bfe_u32 s46, s2, 0x30003
    s_add_u32 s45, s45, s46          ; head
    v_bfe_u32 v3, v2, 2, 2           ; r
    v_lshrrev_b32 v4, 4, v2          ; g
    v_and_b32 v5, 3, v2              ; w4 / c
    v_lshlrev_b32 v6, 6, v4
    v_lshl_add_u32 v6, v5, 4, v6
    v_lshl_add_u32 v{vDKV}, v3, 8, v6
    v_lshl_add_u32 v{vDKV}, v1, 12, v{vDKV}
    v_lshl_add_u32 v{vDW}, v3, 13, v6
    v_lshl_add_u32 v{vDW}, v1, 17, v{vDW}
    v_lshlrev_b32 v{vST}, 4, v2
    v_lshl_add_u32 v{vH0}, v1, 16, v{vST}
    v_add_u32 v{vH1}, 0x8000, v{vH0}
    v_bfe_u32 v6, v2, 2, 3
    v_mul_u32_u24 v6, 1040, v6
    v_lshl_add_u32 v6, v5, 6, v6
    v_lshrrev_b32 v7, 5, v2          ; h
    v_lshl_add_u32 v{vK0}, v7, 4, v6
    v_and_b32 v8, 1, v4
    v_lshlrev_b32 v8, 5, v8
    v_lshl_add_u32 v8, v3, 6, v8
    v_and_b32 v9, 1, v2
    v_lshl_add_u32 v8, v9, 4, v8
    v_bfe_u32 v9, v2, 1, 1
    v_lshl_add_u32 v8, v9, 3, v8
    v_lshl_add_u32 v{vW}, v7, 11, v8
    v_lshl_add_u32 v{vV0}, v7, 10, v8
    v_add_u32 v{vV0}, {SLOT}, v{vV0}
    s_lshl_b32 s{sWV}, s{sWave}, 12
    s_add_u32 s{sWV}, s{sWV}, {SLOT}
    s_mul_i32 s{sWK}, s{sWave}, 4160
    s_lshl_b32 s46, s45, 19
    s_add_u32 s46, s46, {1536*256}
    s_lshl_b32 s47, s45, 8
    s_lshl_b32 s48, s44, 18
    s_add_u32 s48, s48, {WS_H}
    s_waitcnt lgkmcnt(0)""")
    a.srd_off(sW, 8, "s47", "0x400000")
    a(f"s_sub_u32 s{sW+2}, s{sW+2}, s47")
    a.srd_off(sH, 10, "s48", "0x40000")
    pro = []
    for j in range(5): pro += dma_w(j) + load_h(j)
    a("\n".join(fix_m0(pro)))
    a.srd_off(sK, 4, "s46", "0x20000")
    a.srd_off(sV, 6, "s46", "0x20000")
    a(f"""s_lshl_b32 s48, s44, 21
    s_lshl_b32 s49, s{sWave}, 19
    s_add_u32 s48, s48, s49
    s_lshl_b32 s49, s45, 13
    s_add_u32 s48, s48, s49
    s_add_u32 s48, s48, {WS_O}""")
    a.srd_off(sO, 10, "s48", 262144 + 8192)
    a(f"""s_movk_i32 s{sO1}, 4096
    s_mov_b32 s{sO2}, 262144
    s_mov_b32 s{sO3}, 266240
    s_mov_b32 s{sSecond}, 0
    s_mov_b32 s{sOff}, 0
    s_mov_b32 s{sCur}, 0
    s_mov_b32 s{sPrev}, {3*2*SLOT}
    s_mov_b32 s{sCnt}, 0
    v_mov_b32 v{vK}, v{vK0}
    v_mov_b32 v{vV}, v{vV0}
    v_mov_b32 v{vL0}, 0
    v_mov_b32 v{vL1}, 0""")
    for i in range(32): a(f"v_mov_b32 v{V_M+i}, 0")

    phases = [('QK', 0), ('QK', 1), ('PV', 0)]
    for T in range(7): phases += [('QK', 2*T+2), ('PV', 2*T+1), ('QK', 2*T+3), ('PV', 2*T+2)]
    phases += [('PV', 15)]
    N = 256 + 16*len(phases)
    st = Stream(N)
    start = {ph: 256 + 16*i for i, ph in enumerate(phases)}
    frags = []
    for j in range(8):
        for db in range(4):
            for ks in range(4):
                f = len(frags); r = V_WF + (f % 8)*4
                reads = [f"ds_read_b64_tr_b16 {vr(r+2*rd, 2)}, v{vW} offset:{(4*ks+rd)*1024 + db*256}" for rd in range(2)]
                ms = [mf(vr(acc(db, qb), 16), vr(r), ar(j*32 + (ks*2+qb)*4), '0' if (j == 0 and ks == 0) else vr(acc(db, qb), 16)) for qb in range(2)]
                frags.append((reads, ms))
    for kind, s in phases:
        for i in range(8):
            f = len(frags); r = A_F + (f % 8)*4
            if kind == 'QK':
                ks = i
                reads = [kread(s, ks, r)]
                ms = []
                for qb in range(2):
                    sr = vr(V_S + (s&1)*32 + qb*16, 16)
                    ms.append(mf(sr, ar(r), ar(A_Q + (qb*8+ks)*4), vr(V_M + qb*16, 16) if ks == 0 else sr))
            else:
                jj, db = i >> 2, i & 3
                reads = [f"ds_read_b64_tr_b16 {ar(r+2*rd, 2)}, v{vV} offset:{((s&1)*8 + 4*jj + 2*rd)*1024 + db*256}" for rd in range(2)]
                ms = [mf(vr(acc(db, qb), 16), ar(r), vr(V_P + qb*8 + jj*4), '0' if (s == 0 and jj == 0) else vr(acc(db, qb), 16)) for qb in range(2)]
            frags.append((reads, ms))
    before = {}
    later = []
    wcnt = [48, 48, 48, 48, 44, 36, 28, 20]
    sk = lambda n: f"s_add_u32 m0, s{sWK}, {n*2*SLOT}"
    sv = lambda n: f"s_add_u32 m0, s{sWV}, {n*2*SLOT}"
    bump = f"s_add_u32 s{sOff}, s{sOff}, 16384"
    after_b = {0: dma_w(5) + load_h(5), 1: dma_w(6) + load_h(6), 2: dma_w(7) + load_h(7),
               3: dma_k(sk(0)) + dma_v(sv(0)) + [bump], 4: dma_k(sk(1)), 5: dma_v(sv(1)) + [bump], 6: dma_k(sk(2)), 7: dma_v(sv(2)) + [bump],
               8: dma_k(sk(3))}
    for j in range(8):
        before[16*j] = [f"s_waitcnt vmcnt({wcnt[j]})", "s_barrier"] + ([f"v_add_u32 v{vW}, {SLOT}, v{vW}"] if j else [])
        later.append((max(2*(16*j - D), 0) + 1, after_b[j], 1))
    before[128] = ["s_waitcnt vmcnt(16)", "s_barrier"]
    later.append((2*(128 - D) + 1, after_b[8], 1))
    for T in range(7):
        f0 = start[('QK', 2*T+2)] // 2
        before[f0] = [f"s_add_u32 s{sTmp}, s{sCur}, {2*SLOT}", f"s_cmp_eq_u32 s{sTmp}, {8*SLOT}", f"s_cselect_b32 s{sTmp}, 0, s{sTmp}",
                      "s_waitcnt vmcnt(12)", "s_barrier", f"v_add_u32 v{vK}, s{sTmp}, v{vK0}"]
        lst = dma_v(f"s_add_u32 m0, s{sWV}, s{sPrev}") + [bump] + dma_k(f"s_add_u32 m0, s{sWK}, s{sCur}") + [f"s_mov_b32 s{sPrev}, s{sCur}", f"s_mov_b32 s{sCur}, s{sTmp}"]
        later.append((2*(f0 - D) + 1, lst, 2))
        before[start[('PV', 2*T+2)] // 2] = [f"v_add_u32 v{vV}, s{sCur}, v{vV0}"]
    for f, (reads, ms) in enumerate(frags):
        g = 2*(f - D)
        for x in before.get(f, []): st.put(g - 1 if g > 0 else -1, x)
        for i, rd in enumerate(reads): st.put(g + i if g >= 0 else -1, rd, f)
        st.mfma[2*f], st.mfma[2*f+1] = ms
        st.need[2*f] = f
    for g0, lst, step in later:
        g = g0
        for x in lst:
            st.put(g, x)
            if x.startswith('buffer_'): g += step
    for db in range(4):
        g = 224 + 8*db + 7 + 4
        ops = []
        for qb in range(2):
            for jj in range(2):
                for i in range(4):
                    t = V_P + qb*8 + jj*4 + i; s_ = acc(db, qb) + 8*jj + 2*i
                    ops.append((f"v_cvt_pk_bf16_f32 v{t}, v{s_}, v{s_+1}", f"v_accvgpr_write_b32 a{A_Q + (qb*8 + 2*db + jj)*4 + i}, v{t}"))
        for n in range(8):
            st.put(g + n, ops[2*n][0]); st.put(g + n, ops[2*n+1][0]); st.put(g + n, ops[2*n][1]); st.put(g + n, ops[2*n+1][1])
    def elem(s, e):
        jj, qb, i = e >> 4, (e >> 3) & 1, e & 7
        return V_S + (s&1)*32 + qb*16 + jj*8 + i, qb, V_P + qb*8 + jj*4 + (i >> 1)
    def sm(s, gap_of):
        for e in range(32):
            r, qb, p = elem(s, e); g = gap_of(e)
            st.put(g, f"v_exp_f32 v{r}, v{r}")
        for e in range(32):
            r, qb, p = elem(s, e); g = gap_of(e) + 1
            st.put(g, f"v_add_f32 v{vL0+qb}, v{vL0+qb}, v{r}")
            if e & 1: st.put(g, f"v_cvt_pk_bf16_f32 v{p}, v{r-1}, v{r}")
    sm(0, lambda e: start[('QK', 1)] + 4 + e // 2)
    for s in range(1, 15): sm(s, lambda e: start[('PV', s-1)] + 5 + e)
    tail_extra = []
    p15 = start[('PV', 15)]
    for e in range(32):
        r, qb, p = elem(15, e)
        ex = f"v_exp_f32 v{r}, v{r}"; post = [f"v_add_f32 v{vL0+qb}, v{vL0+qb}, v{r}"] + ([f"v_cvt_pk_bf16_f32 v{p}, v{r-1}, v{r}"] if e & 1 else [])
        if e <= 10:
            st.put(start[('PV', 14)] + 5 + e, ex)
    for e in range(10):
        r, qb, p = elem(15, e)
        st.put(start[('PV', 14)] + 6 + e, f"v_add_f32 v{vL0+qb}, v{vL0+qb}, v{r}")
        if e & 1: st.put(start[('PV', 14)] + 6 + e, f"v_cvt_pk_bf16_f32 v{p}, v{r-1}, v{r}")
    for e in range(11, 16): tail_extra.append(f"v_exp_f32 v{elem(15, e)[0]}, v{elem(15, e)[0]}")
    for e in range(10, 16):
        r, qb, p = elem(15, e)
        if e & 1: tail_extra.append(f"v_cvt_pk_bf16_f32 v{p}, v{r-1}, v{r}")
    for e in range(10, 16):
        r, qb, p = elem(15, e)
        tail_extra.append(f"v_add_f32 v{vL0+qb}, v{vL0+qb}, v{r}")
    for e in range(16, 32):
        r, qb, p = elem(15, e); g = p15 + (e - 16) * 3 // 8
        st.put(g, f"v_exp_f32 v{r}, v{r}")
    for e in range(16, 32):
        r, qb, p = elem(15, e); g = p15 + (e - 16) * 3 // 8 + 1
        if e & 1: st.put(g, f"v_cvt_pk_bf16_f32 v{p}, v{r-1}, v{r}")
        st.put(g, f"v_add_f32 v{vL0+qb}, v{vL0+qb}, v{r}")
    fin = [[f"s_nop 0"], [f"v_permlane32_swap_b32 v{vL0}, v{vL1}"], [f"v_add_f32 v{vT0}, v{vL0}, v{vL1}"],
           [f"v_rcp_f32 v{vT1}, v{vT0}", f"v_cmp_lt_f32 vcc, {hx(2.0**-40)}, v{vT0}", f"s_mov_b32 s{sTmp}, {hx(2.0**64)}", f"v_cmp_gt_f32 s[44:45], s{sTmp}, v{vT0}"],
           [f"v_mov_b32 v{vT2}, v{vT1}", "s_nop 0"], [f"v_permlane32_swap_b32 v{vT1}, v{vT2}", "s_and_b64 s[44:45], s[44:45], vcc"]]
    for i, l in enumerate(fin):
        for x in l: st.put(p15 + 7 + i, x)
    out = st.render()
    slot = lambda g: fix_m0(out[g+1])
    a("\n".join(out[0]))
    l0 = start[('QK', 2)]
    for g in range(l0):
        if g == start[('QK', 1)]: a("L1_qk1:")
        a("\n".join(slot(g)))
    body = [[x for g in range(l0 + 64*T, l0 + 64*T + 64) for x in slot(g)] for T in range(7)]
    for T in range(1, 6): assert body[T] == body[0], T
    nb = [x for g in range(l0, l0 + 64 - 2*D - 1) for x in slot(g)]
    assert body[6][:len(nb)] == nb
    a("L1_loop:")
    a("\n".join(nb))
    a(f"s_cmp_eq_u32 s{sCnt}, 6\ns_cbranch_scc1 L1_last")
    a("\n".join(body[0][len(nb):]))
    a(f"s_add_u32 s{sCnt}, s{sCnt}, 1\ns_branch L1_loop")
    a("L1_last:")
    a("\n".join(body[6][len(nb):]))
    a("\n".join(tail_extra))
    for g in range(p15, N): a("\n".join(slot(g)))
    a(f"""s_cmp_eq_u64 s[44:45], -1
    s_cselect_b32 s46, 0, 1
    v_mov_b32 v{vT0}, s46
    s_lshl_b32 s47, s{sWave}, 2
    v_mov_b32 v{vL0}, s47
    v_add_u32 v{vL0}, {8*SLOT}, v{vL0}
    ds_write_b32 v{vL0}, v{vT0}""")
    so = {(0, 0): '0', (0, 1): f"s{sO1}", (1, 0): f"s{sO2}", (1, 1): f"s{sO3}"}
    for db in range(4):
        for qb in range(2):
            b = acc(db, qb)
            for i in range(16): a(f"v_mul_f32 v{b+i}, v{b+i}, v{vT1+qb}")
            t = V_S + (db*2+qb)*8
            for i in range(8): a(f"v_cvt_pk_bf16_f32 v{t+i}, v{b+2*i}, v{b+2*i+1}")
            for jj in range(2):
                fi = 2*db + jj
                a(f"buffer_store_dwordx4 {vr(t+4*jj)}, v{vST}, s[{sO}:{sO+3}], {so[(qb, fi>>2)]} offen offset:{(fi&3)*1024}")
    a(f"""s_waitcnt lgkmcnt(0)
    s_barrier
    v_mov_b32 v{vL1}, {8*SLOT}
    ds_read_b128 v[0:3], v{vL1}
    s_waitcnt lgkmcnt(0)
    v_or_b32 v0, v0, v1
    v_or3_b32 v0, v0, v2, v3
    s_nop 0
    v_readfirstlane_b32 s46, v0
    s_nop 1
    s_andn2_b32 s46, s46, s{sSecond}
    s_cbranch_scc0 L1_end""")
    a(f"""s_mov_b32 s{sSecond}, 1
    s_mov_b32 s{sOff}, 0
    v_mov_b32 v{vK}, v{vK0}
    v_mov_b32 v{vV}, v{vV0}
    v_mov_b32 v{vL0}, 0xff800000
    v_mov_b32 v{vL1}, 0xff800000
    s_waitcnt vmcnt(0)
    L1_maxloop:
    s_barrier""")
    a("\n".join(fix_m0(dma_k(sk(0)))))
    a("s_waitcnt vmcnt(0)\ns_barrier")
    def simple_qk(s, cinit):
        for ks in range(8): a(kread(s, ks, A_F + 4*ks))
        a("s_waitcnt lgkmcnt(0)")
        for ks in range(8):
            for qb in range(2):
                sr = vr(V_S + (s&1)*32 + qb*16, 16)
                a(mf(sr, ar(A_F + 4*ks), ar(A_Q + (qb*8+ks)*4), cinit(qb) if ks == 0 else sr))
        a("s_nop 15")
    for s in range(2):
        simple_qk(s, lambda qb: '0')
        for qb in range(2):
            for i in range(8):
                r = V_S + s*32 + qb*16 + 2*i
                a(f"v_max3_f32 v{vL0+qb}, v{vL0+qb}, v{r}, v{r+1}")
    a(f"""{bump}
    s_cmp_lt_u32 s{sOff}, 0x20000
    s_cbranch_scc1 L1_maxloop
    s_nop 1
    v_permlane32_swap_b32 v{vL0}, v{vL1}
    s_nop 1
    v_max_f32 v{vT1}, v{vL0}, v{vL1}
    v_sub_f32 v{vT1}, 0, v{vT1}
    v_mov_b32 v{vT2}, v{vT1}
    s_nop 1
    v_permlane32_swap_b32 v{vT1}, v{vT2}
    s_nop 1""")
    for qb in range(2):
        for i in range(16): a(f"v_mov_b32 v{V_M+qb*16+i}, v{vT1+qb}")
    a(f"""v_mov_b32 v{vL0}, 0
    v_mov_b32 v{vL1}, 0
    s_mov_b32 s{sOff}, 0
    s_mov_b32 s{sCur}, 0
    s_mov_b32 s{sPrev}, {3*2*SLOT}
    s_mov_b32 s{sCnt}, 0
    s_barrier""")
    a("\n".join(fix_m0(sum((after_b[j] for j in range(3, 9)), []))))
    a("s_waitcnt vmcnt(0)\ns_barrier")
    simple_qk(0, lambda qb: vr(V_M + qb*16, 16))
    fq = start[('QK', 1)] // 2
    for f in range(fq, fq + D): a("\n".join(frags[f][0]))
    a("s_waitcnt lgkmcnt(0)\ns_branch L1_qk1")
    a("L1_end:\ns_endpgm")
    return ("k1_kernel", 256, 256, 8*SLOT + 16, kdesc("k1_kernel", 512, 256))
```

```python
from common import *
from p1 import mf, fix_m0

def lane_setup(a, vtr, h_shift=11):
    a(f"""v_lshrrev_b32 v1, 6, v0
    v_and_b32 v2, 63, v0
    v_readfirstlane_b32 s32, v1
    v_bfe_u32 v3, v2, 2, 2
    v_lshrrev_b32 v4, 4, v2
    v_and_b32 v5, 3, v2
    v_lshrrev_b32 v7, 5, v2
    v_and_b32 v8, 1, v4
    v_lshlrev_b32 v8, 5, v8
    v_lshl_add_u32 v8, v3, 6, v8
    v_and_b32 v9, 1, v2
    v_lshl_add_u32 v8, v9, 4, v8
    v_bfe_u32 v9, v2, 1, 1
    v_lshl_add_u32 v8, v9, 3, v8
    v_lshl_add_u32 v{vtr}, v7, {h_shift}, v8""")

def gen_k2(a):
    vA0, vA1, vD, vB = 120, 121, 122, 123
    sW, sO, sY, sT, sM = 12, 16, 20, 33, 34
    a("k2_kernel:")
    a("s_cmp_ge_u32 s2, 256\ns_cbranch_scc1 L2_end")
    a(f"s_load_dwordx2 s[4:5], s[0:1], {KA['wo']}\ns_load_dwordx2 s[6:7], s[0:1], {KA['ws']}")
    lane_setup(a, vA0)
    a(f"""v_add_u32 v{vA1}, 0x10000, v{vA0}
    v_lshlrev_b32 v6, 6, v4
    v_lshl_add_u32 v6, v5, 4, v6
    v_lshl_add_u32 v{vD}, v3, 10, v6
    v_lshl_add_u32 v{vD}, v1, 14, v{vD}
    v_lshlrev_b32 v{vB}, 4, v2
    s_bfe_u32 s40, s2, 0x20001       ; s
    s_and_b32 s41, s2, 1
    s_lshl_b32 s41, s41, 3
    s_lshr_b32 s42, s2, 5
    s_add_u32 s41, s41, s42          ; rb128
    s_bfe_u32 s42, s2, 0x20003       ; nb128
    s_lshl_b32 s41, s41, 2
    s_add_u32 s41, s41, s32          ; rb32
    s_lshl_b32 s43, s40, 20
    s_lshl_b32 s44, s42, 8
    s_add_u32 s43, s43, s44
    s_lshl_b32 s44, s41, 18
    s_lshl_b32 s45, s40, 16
    s_add_u32 s44, s44, s45
    s_add_u32 s44, s44, {WS_O}       ; O offset
    s_lshl_b32 s45, s40, 21
    s_lshl_b32 s46, s41, 15
    s_add_u32 s45, s45, s46
    s_lshl_b32 s46, s42, 13
    s_add_u32 s45, s45, s46
    s_add_u32 s45, s45, {WS_YP}
    s_lshl_b32 s{sM}, s32, 12
    s_waitcnt lgkmcnt(0)""")
    a.srd_off(sW, 4, "s43", "0x400000"); a(f"s_sub_u32 s{sW+2}, s{sW+2}, s43")
    a.srd_off(sO, 6, "s44", "0x10000")
    def issue(j):
        out = [f"s_add_u32 m0, s{sM}, {(j%8)*16384}"]
        for i in range(4):
            out += [f"s_mov_b32 s{sT}, {j*65536 + i*3072}", f"buffer_load_dwordx4 v{vD}, s[{sW}:{sW+3}], s{sT} offen offset:{i*1024} lds"]
        out.append(f"s_mov_b32 s{sT}, {j*4096}")
        for ks in range(4): out.append(f"buffer_load_dwordx4 {ar((j%8)*16 + ks*4)}, v{vB}, s[{sO}:{sO+3}], s{sT} offen offset:{ks*1024}")
        return out
    for j in range(5): a("\n".join(issue(j)))
    a.srd_off(sY, 6, "s45", "0x2000")
    D = 6; RING = 8; VF = 64
    st = Stream(256)
    for f in range(256):
        j, ks, nb = f >> 4, (f >> 2) & 3, f & 3
        r = VF + (f % RING)*4; g = f - D
        if f % 32 == 0:
            p = f // 32
            issued = min(2*p + 4, 15)
            st.put(g - 1 if g > 0 else -1, f"s_waitcnt vmcnt({8*(issued - (2*p+1))})"); st.put(g - 1 if g > 0 else -1, "s_barrier")
            gg = max(g, 0) + D + 1 if p else 0
            for jn in (2*p+5, 2*p+6):
                if jn < 16:
                    for x in issue(jn):
                        st.put(gg, x)
                        if x.startswith('buffer_'): gg += 1
        va = vA0 if (j % 8) < 4 else vA1
        for rd in range(2): st.put(g if g >= 0 else -1, f"ds_read_b64_tr_b16 {vr(r+2*rd, 2)}, v{va} offset:{(j%4)*16384 + (4*ks+rd)*1024 + nb*256}", f)
        st.mfma[f] = mf(vr(nb*16, 16), vr(r), ar((j%8)*16 + ks*4), '0' if f < 4 else vr(nb*16, 16))
        st.need[f] = f
    for l in st.render(): a("\n".join(l))
    a(f"s_movk_i32 s{sT}, 4096\ns_nop 7")
    for nb in range(4):
        for i in range(8): a(f"v_cvt_pk_bf16_f32 v{VF+nb*8+i}, v{nb*16+2*i}, v{nb*16+2*i+1}")
        for jj in range(2):
            fi = 2*nb + jj
            a(f"buffer_store_dwordx4 {vr(VF+nb*8+4*jj)}, v{vB}, s[{sY}:{sY+3}], {'0' if fi < 4 else 's%d' % sT} offen offset:{(fi&3)*1024}")
    a("L2_end:\ns_endpgm")
    return ("k2_kernel", 256, 256, 131072, kdesc("k2_kernel", 256, 128))

def gen_k3(a):
    sX, sY, sM, sH, sX1 = 12, 16, 20, 24, 28
    a("k3_kernel:")
    a("s_cmp_ge_u32 s2, 256\ns_cbranch_scc1 L3_end")
    a(f"s_load_dwordx2 s[4:5], s[0:1], {KA['x']}\ns_load_dwordx2 s[6:7], s[0:1], {KA['ws']}")
    a(f"""s_and_b32 s40, s2, 7
    s_lshl_b32 s40, s40, 5
    s_lshr_b32 s41, s2, 3
    s_add_u32 s40, s40, s41
    s_lshr_b32 s41, s40, 2
    s_lshl_b32 s41, s41, 15
    s_and_b32 s42, s40, 3
    s_lshl_b32 s42, s42, 7
    s_add_u32 s41, s41, s42
    s_lshl_b32 s42, s40, 13          ; x offset
    v_and_b32 v1, 7, v0              ; row
    v_lshrrev_b32 v2, 3, v0          ; chunk
    v_lshlrev_b32 v3, 9, v2
    v_lshl_add_u32 v3, v1, 4, v3
    v_add_u32 v4, 0x4000, v3
    v_lshlrev_b32 v5, 4, v2
    v_lshl_add_u32 v5, v1, 10, v5    ; x voffset
    v_lshlrev_b32 v6, 5, v2
    s_waitcnt lgkmcnt(0)""")
    a.srd_off(sY, 6, WS_YP, "0x800000")
    a.srd(sX, 4, 5, "0x200000")
    a.srd_off(sM, 6, WS_MOD + 4096, 8192)
    for s in range(4):
        if s: a("s_add_u32 s43, s43, 0x200000")
        else: a("s_mov_b32 s43, s41")
        for c in range(2): a(f"buffer_load_dwordx4 {vr(16+(s*2+c)*4)}, v{3+c}, s[{sY}:{sY+3}], s43 offen")
    for c in range(2): a(f"buffer_load_dwordx4 {vr(48+4*c)}, v5, s[{sX}:{sX+3}], s42 offen offset:{512*c}")
    a("s_movk_i32 s44, 4096")
    for m_ in range(3):
        for c in range(2):
            for hf in range(2):
                off = m_*2048 + c*1024 + hf*16
                a(f"buffer_load_dwordx4 {vr(64+m_*16+c*8+hf*4)}, v6, s[{sM}:{sM+3}], {'0' if off < 4096 else 's44'} offen offset:{off % 4096}")
    a.srd_off(sH, 6, WS_H2, "0x200000")
    a.srd_off(sX1, 6, WS_X1, "0x200000")
    Y = 112
    for s in range(4):
        a(f"s_waitcnt vmcnt({20-2*s})")
        for c in range(2):
            for d in range(4):
                src = 16+(s*2+c)*4+d; e = Y + c*8 + 2*d
                if s == 0: a(f"v_lshlrev_b32 v{e}, 16, v{src}\nv_and_b32 v{e+1}, 0xffff0000, v{src}")
                else: a(f"v_lshlrev_b32 v8, 16, v{src}\nv_and_b32 v9, 0xffff0000, v{src}\nv_add_f32 v{e}, v{e}, v8\nv_add_f32 v{e+1}, v{e+1}, v9")
    a("s_waitcnt vmcnt(8)")
    for c in range(2):
        for d in range(4):
            src = 48+4*c+d; e = c*8 + 2*d
            a(f"v_lshlrev_b32 v8, 16, v{src}\nv_and_b32 v9, 0xffff0000, v{src}\nv_fma_f32 v8, v{64+e}, v{Y+e}, v8\nv_fma_f32 v9, v{65+e}, v{Y+e+1}, v9\nv_cvt_pk_bf16_f32 v{16+c*4+d}, v8, v9")
    a("v_mov_b32 v10, 0\nv_mov_b32 v11, 0\ns_mov_b32 s45, 0x3f803f80")
    for c in range(2): a(f"buffer_store_dwordx4 {vr(16+4*c)}, v{3+c}, s[{sX1}:{sX1+3}], s41 offen")
    for i in range(8): a(f"v_dot2c_f32_bf16 v10, s45, v{16+i}\nv_dot2c_f32_bf16 v11, v{16+i}, v{16+i}")
    a(f"""s_nop 2
    v_add_f32_dpp v10, v10, v10 row_ror:8 row_mask:0xf bank_mask:0xf
    v_add_f32_dpp v11, v11, v11 row_ror:8 row_mask:0xf bank_mask:0xf
    s_nop 1
    v_permlane32_swap_b32 v10, v11
    s_nop 1
    v_add_f32 v10, v10, v11
    v_mov_b32 v11, v10
    s_nop 1
    v_permlane16_swap_b32 v10, v11
    s_nop 1
    v_add_f32 v10, v10, v11
    v_lshrrev_b32 v12, 6, v0
    v_lshlrev_b32 v12, 2, v12
    v_lshl_add_u32 v12, v1, 5, v12
    v_bfe_u32 v13, v0, 5, 1
    v_lshl_add_u32 v12, v13, 4, v12
    ds_write_b32 v12, v10
    v_lshlrev_b32 v13, 5, v1""")
    for i in range(8): a(f"v_lshlrev_b32 v{Y+2*i}, 16, v{16+i}\nv_and_b32 v{Y+2*i+1}, 0xffff0000, v{16+i}")
    a("s_waitcnt vmcnt(2)")
    for e in range(0, 16, 2): a(f"v_add_f32 v{96+e}, 1.0, v{96+e}\nv_add_f32 v{97+e}, 1.0, v{97+e}\nv_cvt_pk_bf16_f32 v8, v{96+e}, v{97+e}\nv_lshlrev_b32 v{96+e}, 16, v8\nv_and_b32 v{97+e}, 0xffff0000, v8")
    a(f"""s_waitcnt lgkmcnt(0)
    s_barrier
    ds_read_b128 v[24:27], v13
    ds_read_b128 v[28:31], v13 offset:16
    s_waitcnt lgkmcnt(0)
    v_add_f32 v24, v24, v25
    v_add_f32 v26, v26, v27
    v_add_f32 v28, v28, v29
    v_add_f32 v30, v30, v31
    v_add_f32 v24, v24, v26
    v_add_f32 v28, v28, v30
    v_mul_f32 v24, {hx(1/512)}, v24
    v_mul_f32 v28, {hx(1/512)}, v28
    v_fma_f32 v28, -v24, v24, v28
    v_max_f32 v28, 0, v28
    v_add_f32 v28, {hx(1e-5)}, v28
    v_rsq_f32 v28, v28
    s_nop 0
    v_mul_f32 v24, v24, v28""")
    for e in range(16): a(f"v_fma_f32 v{Y+e}, v{Y+e}, v28, -v24")
    for e in range(16): a(f"v_fma_f32 v{Y+e}, v{Y+e}, v{96+e}, v{80+e}")
    for i in range(8): a(f"v_cvt_pk_bf16_f32 v{32+i}, v{Y+2*i}, v{Y+2*i+1}")
    for c in range(2): a(f"buffer_store_dwordx4 {vr(32+4*c)}, v{3+c}, s[{sH}:{sH+3}], s41 offen")
    a("L3_end:\ns_endpgm")
    return ("k3_kernel", 256, 256, 256, kdesc("k3_kernel", 128, 128))

def gen_k4(a):
    vA0, vA1, vD, vB, vBi = 120, 121, 122, 123, 124
    sW, sH, sG, sB, sT, sM = 12, 16, 20, 24, 33, 34
    a("k4_kernel:")
    a("s_cmp_ge_u32 s2, 240\ns_cbranch_scc1 L4_end")
    a(f"s_load_dwordx4 s[4:7], s[0:1], {KA['w1']}\ns_load_dwordx2 s[8:9], s[0:1], {KA['ws']}")
    lane_setup(a, vA0, 9)
    a(f"""v_add_u32 v{vA1}, 0x10000, v{vA0}
    v_lshrrev_b32 v6, 2, v2
    v_mul_u32_u24 v6, 2752, v6
    v_lshl_add_u32 v{vD}, v5, 4, v6
    v_lshlrev_b32 v{vB}, 4, v2
    v_lshlrev_b32 v{vBi}, 4, v7
    s_and_b32 s40, s2, 7
    s_lshl_b32 s40, s40, 1
    s_bfe_u32 s41, s2, 0x10003
    s_add_u32 s40, s40, s41          ; rb128
    s_lshl_b32 s40, s40, 2
    s_add_u32 s40, s40, s32          ; rb32
    s_lshr_b32 s41, s2, 4            ; cbk 0..14
    s_mul_i32 s42, s41, 192
    s_lshl_b32 s43, s40, 15
    s_add_u32 s43, s43, {WS_H2}
    s_mul_i32 s44, s40, {86*1024}
    s_mul_i32 s45, s41, 6144
    s_sub_u32 s46, {86*1024}, s45
    s_add_u32 s44, s44, s45
    s_add_u32 s44, s44, {WS_G}
    s_lshl_b32 s{sM}, s32, 10
    s_mul_i32 s47, s32, {16*2752}
    s_waitcnt lgkmcnt(0)""")
    a.srd_off(sW, 4, "s42", 512*2752); a(f"s_sub_u32 s{sW+2}, s{sW+2}, s42")
    a.srd_off(sH, 8, "s43", "0x8000")
    a.srd_off(sB, 6, "s42", 2752); a(f"s_sub_u32 s{sB+2}, s{sB+2}, s42")
    for nb in range(3):
        for jj in range(2): a(f"buffer_load_dwordx4 {vr(64+(nb*2+jj)*4)}, v{vBi}, s[{sB}:{sB+3}], 0 offen offset:{nb*64+jj*32}")
    def dma(nb, i):
        return [f"s_add_u32 m0, s{sM}, {(nb*32 + 4*i)*1024}", f"s_add_u32 s{sT}, s47, {i*64*2752 + nb*64}", f"buffer_load_dwordx4 v{vD}, s[{sW}:{sW+3}], s{sT} offen lds"]
    for i in range(8):
        a("\n".join(dma(0, i)))
        a(f"s_mov_b32 s{sT}, {i*4096}")
        for k in range(4): a(f"buffer_load_dwordx4 {ar((4*i+k)*4)}, v{vB}, s[{sH}:{sH+3}], s{sT} offen offset:{k*1024}")
    for nb in (1, 2):
        for i in range(8): a("\n".join(dma(nb, i)))
    a.srd_off(sG, 8, "s44", "s46")
    a("s_waitcnt vmcnt(56)")
    for nb in range(3):
        for jj in range(2):
            for d in range(4):
                src = 64+(nb*2+jj)*4+d; e = nb*16 + jj*8 + 2*d
                a(f"v_lshlrev_b32 v{e}, 16, v{src}\nv_and_b32 v{e+1}, 0xffff0000, v{src}")
    D = 6; RING = 8; VF = 64
    st = Stream(96)
    for f in range(96):
        nb, ks = f >> 5, f & 31
        r = VF + (f % RING)*4; g = f - D
        w = None
        if nb == 0 and ks % 8 == 0: w = 16 + 5*(8 - 2*(ks//8) - 2)
        elif nb == 1 and ks == 0: w = 8
        elif nb == 1 and ks == 20: w = 0
        if w is not None:
            st.put(g - 1 if g > 0 else -1, f"s_waitcnt vmcnt({w})"); st.put(g - 1 if g > 0 else -1, "s_barrier")
        va = vA0 if nb < 2 else vA1
        for rd in range(2): st.put(g if g >= 0 else -1, f"ds_read_b64_tr_b16 {vr(r+2*rd, 2)}, v{va} offset:{((nb%2)*32 + ks)*1024 + rd*256}", f)
        st.mfma[f] = mf(vr(nb*16, 16), vr(r), ar(ks*4), vr(nb*16, 16))
        st.need[f] = f
    k0 = -2*math.sqrt(2/math.pi)*math.log2(math.e); k1 = k0*0.044715
    a(f"s_mov_b32 s50, {hx(k0)}\nv_mov_b32 v125, {hx(k1)}\ns_movk_i32 s51, 4096")
    def gelu(nb):
        ops = []
        for p in range(4):
            es = [nb*16 + 4*p + i for i in range(4)]; t = [100+i for i in range(4)]
            ops += [f"v_mul_f32 v{t[i]}, v{es[i]}, v{es[i]}" for i in range(4)]
            ops += [f"v_fma_f32 v{t[i]}, v{t[i]}, v125, s50" for i in range(4)]
            ops += [f"v_mul_f32 v{t[i]}, v{t[i]}, v{es[i]}" for i in range(4)]
            ops += [f"v_exp_f32 v{t[i]}, v{t[i]}" for i in range(4)]
            ops += [f"v_add_f32 v{t[i]}, 1.0, v{t[i]}" for i in range(4)]
            ops += [f"v_rcp_f32 v{t[i]}, v{t[i]}" for i in range(4)]
            ops += [f"v_mul_f32 v{t[i]}, v{t[i]}, v{es[i]}" for i in range(4)]
            ops += [f"v_cvt_pk_bf16_f32 v{104+(nb&1)*8+2*p+i}, v{t[2*i]}, v{t[2*i+1]}" for i in range(2)]
            if p & 1:
                fi = 2*nb + (p >> 1)
                ops.append(f"buffer_store_dwordx4 {vr(104+(nb&1)*8+4*(p>>1))}, v{vB}, s[{sG}:{sG+3}], {'0' if fi < 4 else 's51'} offen offset:{(fi&3)*1024}")
        return ops
    pend = []
    for nb in range(2):
        pend += gelu(nb)
        for g in range(32*(nb+1) + 4, 32*(nb+2) + (4 if nb == 0 else 0)):
            for _ in range(3):
                if pend: st.put(g, pend.pop(0))
    out = st.render()
    for l in out: a("\n".join(l))
    a("\n".join(pend + gelu(2)))
    a("L4_end:\ns_endpgm")
    return ("k4_kernel", 240, 256, 98304, kdesc("k4_kernel", 256, 128))

def gen_k5(a):
    vA, vD, vB0, vB1, vR, vO, vE = 120, 121, 122, 123, 124, 125, 126
    sW, sG, sX1, sMo, sB, sOut, sT, sM = 12, 16, 20, 24, 28, 36, 33, 34
    a("k5_kernel:")
    a("s_cmp_ge_u32 s2, 256\ns_cbranch_scc1 L5_end")
    a(f"s_load_dwordx4 s[4:7], s[0:1], {KA['w2']}\ns_load_dwordx2 s[8:9], s[0:1], {KA['ws']}\ns_load_dwordx2 s[10:11], s[0:1], {KA['out']}")
    lane_setup(a, vA, 9)
    NK = 22; R = 16
    a(f"""v_lshl_add_u32 v{vA}, v1, 15, v{vA}
    v_lshrrev_b32 v6, 2, v2
    v_lshlrev_b32 v6, 10, v6
    v_lshl_add_u32 v{vD}, v5, 4, v6
    v_lshlrev_b32 v{vB0}, 4, v2
    v_add_u32 v{vB1}, {86*1024}, v{vB0}
    v_lshl_add_u32 v{vR}, v1, 15, v{vB0}
    v_and_b32 v6, 31, v2
    v_lshlrev_b32 v6, 10, v6
    v_lshl_add_u32 v{vO}, v7, 4, v6
    v_lshlrev_b32 v{vE}, 4, v7
    s_and_b32 s40, s2, 7
    s_lshl_b32 s40, s40, 2
    s_lshr_b32 s41, s2, 6
    s_add_u32 s40, s40, s41          ; rb64
    s_bfe_u32 s41, s2, 0x30003       ; cb64
    s_lshl_b32 s42, s41, 7
    s_mul_i32 s43, s40, {2*86*1024}
    s_add_u32 s43, s43, {WS_G}
    s_lshl_b32 s{sM}, s32, 15
    s_mul_i32 s50, s32, {NK*16384}   ; w2 soffset
    s_mul_i32 s51, s32, {NK*1024}    ; G soffset
    s_lshl_b32 s44, s40, 1
    s_lshr_b32 s45, s32, 1
    s_add_u32 s44, s44, s45
    s_lshl_b32 s45, s41, 1
    s_and_b32 s46, s32, 1
    s_add_u32 s45, s45, s46
    s_lshl_b32 s46, s44, 15
    s_lshl_b32 s47, s45, 11
    s_add_u32 s47, s47, s46
    s_lshl_b32 s48, s45, 6
    s_add_u32 s46, s46, s48
    s_lshl_b32 s49, s45, 7
    s_waitcnt lgkmcnt(0)""")
    a.srd_off(sW, 4, "s42", 1376*1024); a(f"s_sub_u32 s{sW+2}, s{sW+2}, s42")
    a.srd_off(sG, 8, "s43", 2*86*1024)
    def issue(k):
        out = [f"s_add_u32 m0, s{sM}, {(k%R)*2048}", "s_nop 0", f"buffer_load_dwordx4 v{vD}, s[{sW}:{sW+3}], s50 offen lds",
               f"s_addk_i32 m0, 960", f"buffer_load_dwordx4 {ar((k%R)*8)}, v{vB0}, s[{sG}:{sG+3}], s51 offen",
               f"buffer_load_dwordx4 v{vD}, s[{sW}:{sW+3}], s50 offen offset:64 lds",
               f"buffer_load_dwordx4 {ar((k%R)*8+4)}, v{vB1}, s[{sG}:{sG+3}], s51 offen",
               "s_add_u32 s50, s50, 16384", "s_add_u32 s51, s51, 1024"]
        return out
    PRE = 13
    for k in range(PRE): a("\n".join(issue(k)))
    a.srd_off(sX1, 8, WS_X1, "0x200000")
    a.srd_off(sMo, 8, WS_MOD + 5*2048, 2048)
    a.srd(sB, 6, 7, 1024)
    a.srd(sOut, 10, 11, "0x200000")
    a(f"v_lshlrev_b32 v127, 1, v{vE}")
    for jj in range(2):
        a(f"buffer_load_dwordx4 {vr(96+4*jj)}, v{vB0}, s[{sX1}:{sX1+3}], s47 offen offset:{jj*1024}")
        a(f"buffer_load_dwordx4 {vr(104+4*jj)}, v{vE}, s[{sB}:{sB+3}], s48 offen offset:{jj*32}")
        for hf in range(2): a(f"buffer_load_dwordx4 {vr(128+8*jj+4*hf)}, v127, s[{sMo}:{sMo+3}], s49 offen offset:{jj*64+hf*16}")
    D = 2; RING = 8; VF = 64
    st = Stream(4*NK)
    vm = 4*PRE + 8; issued = PRE
    for f in range(2*NK):
        k, nb = f >> 1, f & 1
        r = VF + (f % RING)*4; g = 2*(f - D)
        if nb == 0:
            after = 4*(issued - 1 - k) + (8 if k < PRE else 0)
            st.put(g - 1 if g > 0 else -1, f"s_waitcnt vmcnt({after})")
            if issued < NK and k >= 1:
                gg = max(g, 0)
                for x in issue(issued):
                    st.put(gg, x)
                    if x.startswith('buffer_') and gg < max(g, 0) + 2: gg += 1
                issued += 1
        for rd in range(2): st.put(g + rd if g >= 0 else -1, f"ds_read_b64_tr_b16 {vr(r+2*rd, 2)}, v{vA} offset:{(k%R)*2048 + nb*1024 + rd*256}", f)
        for rb in range(2):
            q = rb*2 + nb
            st.mfma[2*f+rb] = mf(vr(q*16, 16), vr(r), ar((k%R)*8 + 4*rb), '0' if k == 0 else vr(q*16, 16))
        st.need[2*f] = f
    for l in st.render(): a("\n".join(l))
    a("s_nop 7")
    for q in (0, 2, 1, 3):
        for i in range(4): a(f"ds_write_b128 v{vR}, {vr(q*16+4*i)} offset:{q*4096+i*1024}")
    a(f"""s_lshl_b32 s50, s32, 12
    v_add_u32 v{vR}, s50, v{vB0}
    v_add_u32 v{vB1}, 0x10000, v{vR}
    s_waitcnt lgkmcnt(0)
    s_barrier""")
    for w in range(4):
        for i in range(4): a(f"ds_read_b128 {vr(w*16+4*i)}, v{vR if w < 2 else vB1} offset:{(w%2)*32768+i*1024}")
    for i in range(8): a(f"v_lshlrev_b32 v{64+2*i}, 16, v{104+i}\nv_and_b32 v{65+2*i}, 0xffff0000, v{104+i}")
    for i in range(8): a(f"v_lshlrev_b32 v{80+2*i}, 16, v{96+i}\nv_and_b32 v{81+2*i}, 0xffff0000, v{96+i}")
    for w in range(4):
        a(f"s_waitcnt lgkmcnt({12-4*w})")
        for e in range(16): a(f"v_add_f32 v{64+e}, v{64+e}, v{w*16+e}")
    for e in range(16): a(f"v_fma_f32 v{64+e}, v{64+e}, v{128+e}, v{80+e}")
    for i in range(8): a(f"v_cvt_pk_bf16_f32 v{i}, v{64+2*i}, v{65+2*i}")
    for jj in range(2): a(f"buffer_store_dwordx4 {vr(4*jj)}, v{vO}, s[{sOut}:{sOut+3}], s46 offen offset:{jj*32}")
    a("L5_end:\ns_endpgm")
    return ("k5_kernel", 256, 256, 131072, kdesc("k5_kernel", 272, 144))
```

```python
from build import *
base = build(gens)
def empty(a):
    a("ke_kernel:\ns_endpgm")
    return ("ke_kernel", 256, 256, 0, kdesc("ke_kernel", 8, 8))
we = build(gens + [empty])
def relaunch(s, order):
    lines = s.split('\n')
    ll = {l.split('kernel=')[1].split('_kernel')[0]: l for l in lines if l.startswith('; @launch')}
    rest = [l for l in lines if not l.startswith('; @launch')]
    return '\n'.join([rest[0]] + [ll[k] for k in order] + rest[1:])
o = ['k0','k1','k2','k3','k4','k5']
V = {'A': o, 'B': o + ['ke']*4, 'C': ['k0','k1','k1','k2','k3','k4','k5'], 'D': ['k0','k1','k2','k3','k3','k3','k4','k5'], 'E': ['ke'] + o, 'F': o + o}
for k, v in V.items():
    open(f'var{k}.s', 'w').write(relaunch(we, v) if 'ke' in v else relaunch(base, v))
```
